```python
import torch

def _softmax(x, axis=-1):
    return torch.softmax(x, dim=axis)
def _gelu(x):
    return torch.nn.functional.gelu(x, approximate="tanh")
def _silu(x):
    return torch.nn.functional.silu(x)
def _sigmoid(x):
    return torch.sigmoid(x)
def _layernorm(x, axis=-1, eps=1e-5):
    m = x.mean(dim=axis, keepdim=True)
    v = x.var(dim=axis, keepdim=True, unbiased=False)
    return (x - m) / torch.sqrt(v + eps)
def _scatter_add(tgt, idx, src, axis=0):
    return tgt.clone().index_add_(axis, idx, src)
def _segment_sum(src, seg, n):
    out = torch.zeros((n,) + src.shape[1:], dtype=src.dtype)
    return out.index_add_(0, seg, src)
def _pad(x, pw):
    flat = tuple(v for pair in reversed(pw) for v in pair)
    return torch.nn.functional.pad(x, flat)

kernel_name = 'concat_heads__mha_block_cached__mha_block_cached__near_ridge'

def setup_inputs():

    _w = (lambda a: (lambda t: t.to(torch.bfloat16) if t.is_floating_point() else t)(torch.as_tensor(a)))
    def _A_setup():
        B, Sq, D = 16, 80, 512
        H, Sk, Dh = 32, 80, 128
        return {
            "x": _w((lambda *s: torch.randn(*s, dtype=torch.bfloat16) * 0.8)(B, Sq, D)),
            "k_cache": _w((lambda *s: torch.randn(*s, dtype=torch.bfloat16) * 0.8)(B, H, Sk, Dh)),
            "v_cache": _w((lambda *s: torch.randn(*s, dtype=torch.bfloat16) * 0.05)(B, H, Sk, Dh)),
            "wq": _w((lambda *s: torch.randn(*s, dtype=torch.bfloat16) * 0.8)(D, H * Dh) * (D ** -0.5)),
            "wo": _w((lambda *s: torch.randn(*s, dtype=torch.bfloat16) * 0.05)(H * Dh, D) * ((H * Dh) ** -0.5)),
        }
    _A_in = _A_setup()

    def _B_setup():
        B, Sq, D = 16, 80, 512
        H, Sk, Dh = 32, 80, 128
        return {
            "x": _w((lambda *s: torch.randn(*s, dtype=torch.bfloat16) * 0.8)(B, Sq, D)),
            "k_cache": _w((lambda *s: torch.randn(*s, dtype=torch.bfloat16) * 0.8)(B, H, Sk, Dh)),
            "v_cache": _w((lambda *s: torch.randn(*s, dtype=torch.bfloat16) * 0.05)(B, H, Sk, Dh)),
            "wq": _w((lambda *s: torch.randn(*s, dtype=torch.bfloat16) * 0.8)(D, H * Dh) * (D ** -0.5)),
            "wo": _w((lambda *s: torch.randn(*s, dtype=torch.bfloat16) * 0.05)(H * Dh, D) * ((H * Dh) ** -0.5)),
        }
    _B_in = _B_setup()

    return {
        "A_x": _A_in["x"],
        "A_k_cache": _A_in["k_cache"],
        "A_v_cache": _A_in["v_cache"],
        "A_wq": _A_in["wq"],
        "A_wo": _A_in["wo"],
        "B_x": _B_in["x"],
        "B_k_cache": _B_in["k_cache"],
        "B_v_cache": _B_in["v_cache"],
        "B_wq": _B_in["wq"],
        "B_wo": _B_in["wo"],
    }

def reference(A_x, A_k_cache, A_v_cache, A_wq, A_wo, B_x, B_k_cache, B_v_cache, B_wq, B_wo):
    def _A_ref(x, k_cache, v_cache, wq, wo):
        B, Sq, D = x.shape
        H, Dh = 32, 128
        q = (lambda x, *d: x.permute(*d))((x @ wq).reshape(B, Sq, H, Dh), 0, 2, 1, 3)
        scores = torch.einsum("bhqd,bhkd->bhqk", q, k_cache) * (Dh ** -0.5)
        p = _softmax(scores, axis=-1)
        o = torch.einsum("bhqk,bhkd->bhqd", p, v_cache)
        return (lambda x, *d: x.permute(*d))(o, 0, 2, 1, 3).reshape(B, Sq, H * Dh) @ wo

    def _B_ref(x, k_cache, v_cache, wq, wo):
        B, Sq, D = x.shape
        H, Dh = 32, 128
        q = (lambda x, *d: x.permute(*d))((x @ wq).reshape(B, Sq, H, Dh), 0, 2, 1, 3)
        scores = torch.einsum("bhqd,bhkd->bhqk", q, k_cache) * (Dh ** -0.5)
        p = _softmax(scores, axis=-1)
        o = torch.einsum("bhqk,bhkd->bhqd", p, v_cache)
        return (lambda x, *d: x.permute(*d))(o, 0, 2, 1, 3).reshape(B, Sq, H * Dh) @ wo

    a = _A_ref(A_x, A_k_cache, A_v_cache, A_wq, A_wo)
    b = _B_ref(B_x, B_k_cache, B_v_cache, B_wq, B_wo)
    return torch.concatenate([a, b], axis=-1)
```

```python
NAME = "concat_heads__mha_block_cached__mha_block_cached__near_ridge"

HEADER_COMMENT = open("cdna_kernels/" + NAME + ".s.ref").read().split("; Override launch")[0]

class Asm:
    def __init__(self):
        self.lines = []
    def __call__(self, s=""):
        for l in s.split("\n"):
            self.lines.append(l if (l.endswith(":") or l.startswith(".") or l.startswith(";")) else "    " + l.strip())
    def label(self, n):
        self.lines.append(n + ":")
    def text(self):
        return "\n".join(self.lines) + "\n"

def vr(a, n=1):
    return f"v{a}" if n == 1 else f"v[{a}:{a+n-1}]"
def ar(a, n=1):
    return f"a{a}" if n == 1 else f"a[{a}:{a+n-1}]"
def sr(a, n=1):
    return f"s{a}" if n == 1 else f"s[{a}:{a+n-1}]"

def kernel_text(label, body, vgpr, agpr, sgpr=102):
    acc_off = (vgpr + 3) // 4 * 4
    nfv = acc_off + agpr if agpr else vgpr
    t = f".globl {label}\n.p2align 8\n.type {label},@function\n{label}:\n" + body + "    s_endpgm\n"
    d = f""".p2align 6
.amdhsa_kernel {label}
  .amdhsa_next_free_vgpr {nfv}
  .amdhsa_next_free_sgpr {sgpr}
  .amdhsa_accum_offset {acc_off}
  .amdhsa_group_segment_fixed_size 0
  .amdhsa_kernarg_size 104
  .amdhsa_user_sgpr_count 2
  .amdhsa_user_sgpr_kernarg_segment_ptr 1
  .amdhsa_system_sgpr_workgroup_id_x 1
.end_amdhsa_kernel
"""
    return t, d

def file_text(launch_lines, kernels):
    s = HEADER_COMMENT
    for l in launch_lines:
        s += "; @launch " + l + "\n"
    s += '.amdgcn_target "amdgcn-amd-amdhsa--gfx950"\n.text\n'
    for t, d in kernels:
        s += t
    s += '.section .rodata,"a"\n'
    for t, d in kernels:
        s += d
    return s

def interleave(mfmas, fillers, per=None):
    out = []
    n = len(mfmas); m = len(fillers)
    fi = 0
    for i, x in enumerate(mfmas):
        out.append(x)
        tgt = (i + 1) * m // n
        while fi < tgt:
            out.append(fillers[fi]); fi += 1
    return out
```

```python
import sys
from asmgen import *

def prologue(a, nw=4):
    a("s_cmp_ge_u32 s2, 256\ns_cbranch_scc1 L_end")
    a("s_load_dwordx2 s[4:5], s[0:1], 24")
    a("s_load_dwordx2 s[6:7], s[0:1], 96")
    a("s_load_dwordx2 s[16:17], s[0:1], 0")
    a("s_memrealtime s[40:41]")
    a("s_waitcnt lgkmcnt(0)")
    a("s_mov_b32 s8, s4\ns_mov_b32 s9, s5\ns_mov_b32 s10, 0x400000\ns_mov_b32 s11, 0x20000")
    a("s_mov_b32 s12, s6\ns_mov_b32 s13, s7\ns_mov_b32 s14, 0x10000000\ns_mov_b32 s15, 0x20000")
    a("s_mov_b32 s18, 1310720\ns_mov_b32 s19, 0x20000")
    a("s_mov_b32 s20, 0x05040100\ns_mov_b32 s21, 0x07060302")
    a("v_and_b32 v1, 63, v0\nv_lshrrev_b32 v2, 6, v0")
    a("v_lshrrev_b32 v3, 4, v1\nv_and_b32 v4, 15, v1")
    a("s_and_b32 s3, s2, 7\ns_lshl_b32 s3, s3, 10")
    a("v_lshlrev_b32 v5, 4, v0")
    a("v_readfirstlane_b32 s24, v2\ns_nop 3\ns_lshl_b32 s24, s24, 10")
    for n in range(20):
        a(f"s_add_u32 m0, s24, {n*4096}\ns_mov_b32 s25, {n*4096}\nbuffer_load_dwordx4 v5, s[16:19], s25 offen lds")
    a("s_waitcnt vmcnt(0)")

def epilogue(a):
    a("s_memtime s[44:45]")
    a("s_memrealtime s[46:47]")
    a("s_waitcnt vmcnt(0) lgkmcnt(0)")
    a("s_sub_u32 s44, s44, s42\ns_subb_u32 s45, s45, s43")
    a("s_lshl_b32 s3, s2, 6\ns_add_u32 s3, s3, %d" % (200 << 20))
    a("v_mov_b32 v8, s40\nv_mov_b32 v9, s41\nv_mov_b32 v10, s46\nv_mov_b32 v11, s47")
    a("s_add_u32 s44, s44, s40\ns_addc_u32 s45, s45, s41")
    a("v_mov_b32 v12, s44\nv_mov_b32 v13, s45\nv_mov_b32 v14, s48\nv_mov_b32 v15, s49")
    a("v_mov_b32 v5, s3")
    a("v_cmp_eq_u32 vcc, 0, v0\ns_and_saveexec_b64 s[30:31], vcc\ns_cbranch_execz L_end")
    a("buffer_store_dwordx4 v[8:11], v5, s[12:15], 0 offen\nbuffer_store_dwordx4 v[12:15], v5, s[12:15], 0 offen offset:16")
    a("s_waitcnt vmcnt(0)")
    a.label("L_end")

def gen_reg(reps=4, NS=4, do_loads=True, do_perm=True, do_ds=True, do_mfma=True, place=1, fine=False):
    a = Asm(); prologue(a)
    a(f"v_lshlrev_b32 v5, 8, v2\nv_lshlrev_b32 v6, 4, v4\nv_add_u32 v5, v5, v6\nv_add_u32 v5, s3, v5")
    a("v_lshlrev_b32 v6, 16, v3\nv_add_u32 v5, v5, v6")
    for j in range(8): a(f"v_add_u32 v{8+j}, {j*8192}, v5")
    a("v_lshlrev_b32 v7, 4, v1")
    RAW = 16; SZ = 32; AF = RAW + NS * SZ; nv = AF + 12
    ACC = 0; NACC = 160; BF = NACC; na = BF + 40
    for r in range(NACC): a(f"v_accvgpr_write_b32 a{r}, 0")
    def loads(stage): return [f"buffer_load_dwordx4 {vr(RAW+stage*SZ+j*4, 4)}, v{8+j}, s[8:11], s22 offen" for j in range(8)]
    def dsreads(buf, kap): return [f"ds_read_b128 {ar(BF+buf*20+s*4,4)}, v7 offset:{(kap*5+s)*1024 % 65536}" for s in range(5)]
    NAF = 3
    def perms(stage, c, q):
        sel = "s20" if c % 2 == 0 else "s21"
        return [f"v_perm_b32 v{AF+(q%NAF)*4+p}, v{RAW+stage*SZ+(2*p+1)*4+(c>>1)}, v{RAW+stage*SZ+(2*p)*4+(c>>1)}, {sel}" for p in range(4)]
    a("s_mov_b32 s22, 0")
    for st in range(NS - 1):
        for l in loads(st): a(l)
        a("s_add_u32 s22, s22, 0x40000\ns_and_b32 s22, s22, 0x3fffff")
    a("s_barrier")
    for l in dsreads(0, 0): a(l)
    a("s_waitcnt vmcnt(0) lgkmcnt(0)")
    for l in perms(0, 0, 0): a(l)
    for l in perms(0, 1, 1): a(l)
    for l in perms(0, 2, 2): a(l)
    a("s_barrier")
    a("s_mov_b32 s62, 0")
    a(f"v_mov_b32 v{nv}, 0")
    a("s_memtime s[42:43]\ns_memrealtime s[48:49]")
    U = NS * 3 if NS % 2 == 0 else NS * 6
    import math
    U = math.lcm(NS, 2, 3)
    a(f"s_mov_b32 s23, {reps*16//U if reps*16%U==0 else reps*16//U}")
    a("s_waitcnt lgkmcnt(0)")
    a(".p2align 6")
    a.label("L_loop")
    q = 0
    for u in range(U):
        st = u % NS; buf = u & 1
        ld = loads((st + NS - 1) % NS) if do_loads else []
        ds = dsreads(buf ^ 1, (u + 1) % 16) if do_ds else []
        for c in range(8):
            m = [f"v_mfma_f32_16x16x32_bf16 {ar(ACC+(c*5+s)*4,4)}, {vr(AF+(q%NAF)*4,4)}, {ar(BF+buf*20+s*4,4)}, {ar(ACC+(c*5+s)*4,4)}" for s in range(5)]
            if c < 7: pm = perms(st, c + 1, q + 1)
            else: pm = perms((st + 1) % NS, 0, q + 1)
            if not do_perm: pm = []
            gaps = [[] for _ in range(5)]
            if place == 1:
                for z, x in enumerate(pm): gaps[z].append(x)
                if ld: gaps[4].append(ld[c])
                if ds and c < 5: gaps[2].append(ds[c])
                if c == 6 and do_loads: gaps[4].append(f"s_waitcnt vmcnt({(NS-2)*8-1})")
                if c == 7:
                    gaps[4].append("s_add_u32 s22, s22, 0x40000"); gaps[3].append("s_and_b32 s22, s22, 0x3fffff") if False else None
                    if do_ds: gaps[4].append("s_waitcnt lgkmcnt(0)")
                if c == 0: gaps[0].insert(0, "s_and_b32 s22, s22, 0x3fffff")
            elif place == 2:
                for z, x in enumerate(pm): gaps[z // 2].append(x)
                if ld: gaps[2].append(ld[c])
                if ds and c < 5: gaps[3].append(ds[c])
                if c == 6 and do_loads: gaps[4].append(f"s_waitcnt vmcnt({(NS-2)*8-1})")
                if c == 7:
                    gaps[3].append("s_add_u32 s22, s22, 0x40000"); gaps[4].append("s_and_b32 s22, s22, 0x3fffff")
                    if do_ds: gaps[4].append("s_waitcnt lgkmcnt(0)")
            for s in range(5):
                if do_mfma: a(m[s])
                for x in gaps[s]: a(x)
            q += 1
        if fine and u % 4 == 3:
            a("s_memrealtime s[60:61]\ns_waitcnt lgkmcnt(0)\ns_sub_u32 s60, s60, s48")
            a(f"s_mov_b32 m0, s62\ns_nop 0\nv_writelane_b32 v{nv}, s60, m0\ns_add_u32 s62, s62, 1")
    a("s_sub_u32 s23, s23, 1\ns_cmp_gt_i32 s23, 0\ns_cbranch_scc1 L_loop")
    if fine:
        a(f"s_lshl_b32 s3, s2, 8\ns_add_u32 s3, s3, {100<<20}\nv_lshlrev_b32 v5, 2, v1\nv_add_u32 v5, s3, v5")
        a("v_cmp_gt_u32 vcc, 64, v0\ns_and_saveexec_b64 s[30:31], vcc\ns_cbranch_execz L_skip")
        a(f"buffer_store_dword v{nv}, v5, s[12:15], 0 offen")
        a.label("L_skip")
        a("s_mov_b64 exec, s[30:31]")
    epilogue(a)
    k = kernel_text(NAME + "_kernel", a.text(), nv + 1, na)
    return file_text([f"grid=(256,1,1) block=(256,1,1) lds=163840"], [k])

def gen_dma(reps=4, NS=2, do_loads=True, do_mfma=True):
    a = Asm(); prologue(a)
    a("v_lshlrev_b32 v5, 1, v3")
    a("v_xor_b32 v6, v4, v5")
    a("v_xor_b32 v7, 8, v6")
    a("v_lshlrev_b32 v6, 4, v6\nv_lshlrev_b32 v7, 4, v7")
    a("v_lshlrev_b32 v5, 13, v3")
    a("v_lshlrev_b32 v8, 8, v2\nv_add_u32 v5, v5, v8\nv_add_u32 v5, s3, v5")
    a("v_add_u32 v8, v5, v6\nv_add_u32 v9, v5, v7")
    for j in range(8): a(f"s_mov_b32 s{50+j}, {j*32768}")
    a("v_readfirstlane_b32 s26, v2\ns_nop 3\ns_mul_i32 s26, s26, 20480\ns_add_u32 s26, s26, 81920")
    a("v_lshrrev_b32 v10, 2, v4")
    a("v_and_b32 v11, 3, v4")
    a("v_and_b32 v12, 1, v3\nv_lshlrev_b32 v12, 2, v12\nv_or_b32 v12, v12, v10\nv_lshlrev_b32 v12, 1, v12")
    a("v_lshlrev_b32 v13, 3, v3\nv_add_u32 v13, v13, v10\nv_lshlrev_b32 v13, 8, v13")
    a("v_and_b32 v14, 1, v11\nv_lshlrev_b32 v14, 3, v14\nv_add_u32 v13, v13, v14\nv_add_u32 v13, s26, v13")
    a("v_lshrrev_b32 v11, 1, v11")
    for c in range(8):
        a(f"v_or_b32 v14, {2*c}, v11\nv_xor_b32 v14, v14, v12\nv_lshlrev_b32 v14, 4, v14\nv_add_u32 v{16+c}, v13, v14")
    a("v_lshlrev_b32 v7, 4, v1")
    AF = 24; NAF = 4; nv = AF + NAF * 4
    ACC = 0; NACC = 160; BF = NACC; na = BF + 40
    for r in range(NACC): a(f"v_accvgpr_write_b32 a{r}, 0")
    def load(stage, j):
        return [f"s_add_u32 m0, s26, {stage*8192 + j*1024}", f"buffer_load_dwordx4 v{8+((j>>1)&1)}, s[8:11], s{50+j} offen lds", f"s_add_u32 s{50+j}, s{50+j}, 0x40000", ]
    def dsreads(buf, kap): return [f"ds_read_b128 {ar(BF+buf*20+s*4,4)}, v7 offset:{(kap*5+s)*1024 % 65536}" for s in range(5)]
    def trs(stage, c, q):
        return [f"ds_read_b64_tr_b16 {vr(AF+(q%NAF)*4+2*h,2)}, v{16+c} offset:{stage*8192+h*1024}" for h in range(2)]
    for st in range(NS):
        for j in range(8):
            for l in load(st, j): a(l)
    a("s_barrier")
    for l in dsreads(0, 0): a(l)
    a("s_waitcnt vmcnt(0) lgkmcnt(0)")
    for l in trs(0, 0, 0) + trs(0, 1, 1): a(l)
    a("s_barrier")
    a("s_memtime s[42:43]\ns_memrealtime s[48:49]")
    U = 16
    a(f"s_mov_b32 s23, {reps}")
    a("s_waitcnt lgkmcnt(0)")
    a(".p2align 6")
    a.label("L_loop")
    q = 0
    for u in range(U):
        st = u % NS; buf = u & 1
        ds = dsreads(buf ^ 1, (u + 1) % 16)
        for c in range(8):
            m = [f"v_mfma_f32_16x16x32_bf16 {ar(ACC+(c*5+s)*4,4)}, {vr(AF+(q%NAF)*4,4)}, {ar(BF+buf*20+s*4,4)}, {ar(ACC+(c*5+s)*4,4)}" for s in range(5)]
            c2 = c + 2
            tr = trs(st if c2 < 8 else (st + 1) % NS, c2 % 8, q + 2)
            gaps = [[] for _ in range(5)]
            gaps[0].append(tr[0]); gaps[1].append(tr[1])
            if c < 5: gaps[2].append(ds[c])
            if do_loads:
                l = load((st + NS - 1) % NS if NS > 1 else 0, c)
                gaps[2].append(l[0]); gaps[3].append(l[1]); gaps[4].append(l[2])
                if c == 5: gaps[4].append(f"s_waitcnt vmcnt({6})")
            gaps[4].append(f"s_waitcnt lgkmcnt({2 + (1 if c < 5 else 0)})")
            for s in range(5):
                if do_mfma: a(m[s])
                for x in gaps[s]: a(x)
            q += 1
        if u == U - NS - 1:
            for j in range(8): a(f"s_and_b32 s{50+j}, s{50+j}, 0x3fffff")
    a("s_sub_u32 s23, s23, 1\ns_cmp_gt_i32 s23, 0\ns_cbranch_scc1 L_loop")
    epilogue(a)
    k = kernel_text(NAME + "_kernel", a.text(), nv, na)
    return file_text([f"grid=(256,1,1) block=(256,1,1) lds=163840"], [k])

if __name__ == "__main__":
    V = {
        "reg_p1": lambda: gen_reg(reps=6, place=1),
        "reg_p2": lambda: gen_reg(reps=6, place=2),
        "reg_mfma": lambda: gen_reg(reps=6, do_loads=False, do_perm=False, do_ds=False),
        "reg_noload": lambda: gen_reg(reps=6, do_loads=False),
        "reg_noperm": lambda: gen_reg(reps=6, do_perm=False),
        "reg_loadonly": lambda: gen_reg(reps=6, do_perm=False, do_ds=False, do_mfma=False),
        "reg_p2_fine": lambda: gen_reg(reps=12, place=2, fine=True),
        "reg_mfma_fine": lambda: gen_reg(reps=12, do_loads=False, do_perm=False, do_ds=False, fine=True),
        "dma": lambda: gen_dma(reps=6),
        "dma_noload": lambda: gen_dma(reps=6, do_loads=False),
    }
    for n, f in V.items(): open(f"p1b_{n}.s", "w").write(f())
```

```python
from asmgen import *
from mb_p1b import prologue, epilogue

def gen(order="A", shape=16, accv=False, zero=None, steps=96):
    a = Asm(); prologue(a)
    a("v_lshlrev_b32 v7, 4, v1")
    a("s_barrier")
    if accv:
        A0 = 0; B0 = 32; AR, BR, CR = ar, ar, vr; C0 = 16; nv = 16 + 160; na = 52
    else:
        A0 = 16; B0 = 160; AR, BR, CR = vr, ar, ar; C0 = 0; nv = 48; na = 180
    for c in range(8): a(f"ds_read_b128 {AR(A0+4*c,4)}, v7 offset:{(c+7)*1024}")
    for s in range(5): a(f"ds_read_b128 {BR(B0+4*s,4)}, v7 offset:{s*1024}")
    a("s_waitcnt lgkmcnt(0)")
    if zero == "A":
        for r in range(32): a(f"v_mov_b32 v{A0+r}, 0")
    for r in range(160):
        a(f"v_mov_b32 v{C0+r}, 0" if accv else f"v_accvgpr_write_b32 a{C0+r}, 0")
    a("s_barrier")
    a("s_memtime s[42:43]\ns_memrealtime s[48:49]")
    a(f"s_mov_b32 s23, {steps//4}")
    a("s_waitcnt lgkmcnt(0)")
    a(".p2align 6")
    a.label("L_loop")
    for u in range(4):
        if shape == 16:
            if order == "A": seq = [(c, s) for c in range(8) for s in range(5)]
            elif order == "B": seq = [(c, s) for s in range(5) for c in range(8)]
            elif order == "mix": seq = [((t * 3) % 8 if False else t % 8, t % 5) for t in range(40)]
            elif order == "same": seq = [(c, s) for c in range(8) for s in range(5)]
            elif order == "swapA": seq = [(c, s) for c in range(8) for s in range(5)]
            for (c, s) in seq:
                ca, sb = (0, 0) if order == "same" else (c, s)
                d = CR(C0+(c*5+s)*4,4)
                if order == "swapA": a(f"v_mfma_f32_16x16x32_bf16 {d}, {BR(B0+sb*4,4)}, {AR(A0+ca*4,4)}, {d}")
                else: a(f"v_mfma_f32_16x16x32_bf16 {d}, {AR(A0+ca*4,4)}, {BR(B0+sb*4,4)}, {d}")
        else:
            for kk in range(2):
                for c in range(2):
                    for s in range(5):
                        d = CR(C0+(c*5+s)*16,16)
                        a(f"v_mfma_f32_32x32x16_bf16 {d}, {AR(A0+(c+2*kk+4*(u&1))*4,4)}, {BR(B0+s*4,4)}, {d}")
    a("s_sub_u32 s23, s23, 1\ns_cmp_gt_i32 s23, 0\ns_cbranch_scc1 L_loop")
    epilogue(a)
    k = kernel_text(NAME + "_kernel", a.text(), nv, na)
    return file_text([f"grid=(256,1,1) block=(256,1,1) lds=163840"], [k])

if __name__ == "__main__":
    V = {
        "A": lambda: gen("A"), "B": lambda: gen("B"), "mix": lambda: gen("mix"), "same": lambda: gen("same"),
        "s32": lambda: gen(shape=32), "accv": lambda: gen("A", accv=True), "zeroA": lambda: gen("A", zero="A"), "swapA": lambda: gen("swapA"),
    }
    for n, f in V.items(): open(f"pw_{n}.s", "w").write(f())
```
